```python
import torch

def _softmax(x, axis=-1):
    return torch.softmax(x, dim=axis)
def _gelu(x):
    return torch.nn.functional.gelu(x, approximate="tanh")
def _silu(x):
    return torch.nn.functional.silu(x)
def _sigmoid(x):
    return torch.sigmoid(x)
def _layernorm(x, axis=-1, eps=1e-5):
    m = x.mean(dim=axis, keepdim=True)
    v = x.var(dim=axis, keepdim=True, unbiased=False)
    return (x - m) / torch.sqrt(v + eps)
def _scatter_add(tgt, idx, src, axis=0):
    return tgt.clone().index_add_(axis, idx, src)
def _segment_sum(src, seg, n):
    out = torch.zeros((n,) + src.shape[1:], dtype=src.dtype)
    return out.index_add_(0, seg, src)
def _pad(x, pw):
    flat = tuple(v for pair in reversed(pw) for v in pair)
    return torch.nn.functional.pad(x, flat)

kernel_name = 'parallel_sum__ssm_conv_s4__swiglu_ffn__prompt'

def setup_inputs():

    _w = (lambda a: (lambda t: t.to(torch.bfloat16) if t.is_floating_point() else t)(torch.as_tensor(a)))
    def _A_setup():
        B, L, D, N = 1, 2048, 640, 192
        A_re = -(lambda _x: torch.exp(torch.as_tensor(_x)))((lambda *s: torch.randn(*s, dtype=torch.bfloat16) * 3.2)(D, N))
        A_im = torch.pi * (lambda *s: torch.randn(*s, dtype=torch.bfloat16) * 0.2)(D, N)
        B_re = (lambda *s: torch.randn(*s, dtype=torch.bfloat16) * 0.4)(D, N)
        B_im = (lambda *s: torch.randn(*s, dtype=torch.bfloat16) * 0.4)(D, N)
        C_re = (lambda *s: torch.randn(*s, dtype=torch.bfloat16) * 0.4)(D, N)
        C_im = (lambda *s: torch.randn(*s, dtype=torch.bfloat16) * 0.4)(D, N)
        log_dt = (lambda *s: torch.randn(*s, dtype=torch.bfloat16) * 0.2)(D) * 0.5 - 4.0
        Dskip = (lambda *s: torch.randn(*s, dtype=torch.bfloat16) * 0.4)(D)
        return {
            "u": _w((lambda *s: torch.randn(*s, dtype=torch.bfloat16) * 0.05)(B, L, D)),
            "A_re": _w(A_re),
            "A_im": _w(A_im),
            "B_re": _w(B_re),
            "B_im": _w(B_im),
            "C_re": _w(C_re),
            "C_im": _w(C_im),
            "log_dt": _w(log_dt),
            "Dskip": _w(Dskip),
        }
    _A_in = _A_setup()

    def _B_setup():
        B, S, D, F = 1, 2048, 640, 1536
        return {
            "x": _w((lambda *s: torch.randn(*s, dtype=torch.bfloat16) * 0.05)(B, S, D)),
            "w_gate": _w((lambda *s: torch.randn(*s, dtype=torch.bfloat16) * 0.05)(D, F)),
            "w_up": _w((lambda *s: torch.randn(*s, dtype=torch.bfloat16) * 0.05)(D, F)),
            "w_down": _w((lambda *s: torch.randn(*s, dtype=torch.bfloat16) * 0.05)(F, D)),
        }
    _B_in = _B_setup()

    return {
        "A_u": _A_in["u"],
        "A_A_re": _A_in["A_re"],
        "A_A_im": _A_in["A_im"],
        "A_B_re": _A_in["B_re"],
        "A_B_im": _A_in["B_im"],
        "A_C_re": _A_in["C_re"],
        "A_C_im": _A_in["C_im"],
        "A_log_dt": _A_in["log_dt"],
        "A_Dskip": _A_in["Dskip"],
        "B_x": _B_in["x"],
        "B_w_gate": _B_in["w_gate"],
        "B_w_up": _B_in["w_up"],
        "B_w_down": _B_in["w_down"],
    }

def reference(A_u, A_A_re, A_A_im, A_B_re, A_B_im, A_C_re, A_C_im, A_log_dt, A_Dskip, B_x, B_w_gate, B_w_up, B_w_down):
    def _A_ref(u, A_re, A_im, B_re, B_im, C_re, C_im, log_dt, Dskip):
        Bsz, L, D = u.shape
        dt = torch.exp(log_dt)[:, None]
        A = A_re + 1j * A_im
        Bc = B_re + 1j * B_im
        Cc = C_re + 1j * C_im
        logdA = dt * A
        dB = dt * Bc
        l = (lambda x, dt: x.to(dt))(torch.arange(L), A_re.dtype)
        P = torch.exp(logdA[:, :, None] * l[None, None, :])
        K = torch.einsum("dn,dnl,dn->dl", Cc, P, dB).real
        L2 = 2 * L
        Kp = _pad(K, ((0, 0), (0, L)))
        up = (lambda x, *d: x.permute(*d))(u, 0, 2, 1)
        up = _pad(up, ((0, 0), (0, 0), (0, L)))
        Kf = (lambda x, axes=(-2,-1): torch.fft.rfft2(x.float(), dim=axes))(Kp[:, None, :], axes=(-2, -1))
        Uf = (lambda x, axes=(-2,-1): torch.fft.rfft2(x.float(), dim=axes))(up[:, :, None, :], axes=(-2, -1))
        Yf = Uf * Kf[None, :, :, :]
        y = (lambda x, s, axes=(-2,-1): torch.fft.irfft2(x, s=s, dim=axes).to(torch.bfloat16))(Yf, (1, L2), axes=(-2, -1))[:, :, 0, :L]
        y = (lambda x, *d: x.permute(*d))(y, 0, 2, 1) + u * Dskip[None, None, :]
        return y

    def _B_ref(x, w_gate, w_up, w_down):
        g = _silu(x @ w_gate)
        u = x @ w_up
        return (g * u) @ w_down

    x = A_u
    xn = _layernorm(x, axis=-1)
    return x + _A_ref(xn, A_A_re, A_A_im, A_B_re, A_B_im, A_C_re, A_C_im, A_log_dt, A_Dskip) + _B_ref(xn, B_w_gate, B_w_up, B_w_down)
```

```python
class A:
    def __init__(self):
        self.lines = []
    def __call__(self, s):
        for l in s.split('\n'):
            self.lines.append(l)
    def text(self):
        return '\n'.join(self.lines) + '\n'

def kernel_header(name):
    return f""".text
.globl {name}
.p2align 8
.type {name},@function
{name}:
"""
def kernel_desc(name, vgpr, sgpr=102, accum=None, kernarg=128, extra=''):
    if accum is None:
        accum = (vgpr + 3)//4*4
        if accum > 256: accum = 256
    return f""".section .rodata,"a"
.p2align 6
.amdhsa_kernel {name}
  .amdhsa_next_free_vgpr {vgpr}
  .amdhsa_next_free_sgpr {sgpr}
  .amdhsa_accum_offset {accum}
  .amdhsa_group_segment_fixed_size 0
  .amdhsa_kernarg_size {kernarg}
  .amdhsa_user_sgpr_count 2
  .amdhsa_user_sgpr_kernarg_segment_ptr 1
  .amdhsa_system_sgpr_workgroup_id_x 1
{extra}.end_amdhsa_kernel
"""
def srd(a, d, base, nbytes):
    a(f"s_mov_b32 s{d}, s{base}")
    a(f"s_mov_b32 s{d+1}, s{base+1}")
    a(f"s_mov_b32 s{d+2}, {nbytes}")
    a(f"s_mov_b32 s{d+3}, 0x20000")
```

```python
import re
REG = re.compile(r'\b([vas])\[(\d+):(\d+)\]|\b([vas])(\d+)\b|\b(vcc|exec|m0|scc|vcc_lo|vcc_hi)\b')
def regs(op):
    out = set()
    for m in REG.finditer(op):
        if m.group(1):
            for i in range(int(m.group(2)), int(m.group(3))+1): out.add((m.group(1), i))
        elif m.group(4): out.add((m.group(4), int(m.group(5))))
        else:
            n = m.group(6)
            if n.startswith('vcc'): n = 'vcc'
            out.add((n, 0))
    return out
TRANS = ('v_exp_f32','v_log_f32','v_rcp_f32','v_rsq_f32','v_sqrt_f32','v_sin_f32','v_cos_f32','v_rcp_iflag_f32')
def split_ops(s):
    ops=[]; depth=0; cur=''
    for ch in s:
        if ch in '[(': depth+=1
        if ch in '])': depth-=1
        if ch==',' and depth==0: ops.append(cur.strip()); cur=''
        else: cur+=ch
    ops.append(cur.strip())
    return ops
class I:
    pass
def parse(line):
    s = line.split(';')[0].strip()
    if not s or s.endswith(':') or s.startswith('.'): return None
    parts = s.split(None, 1)
    op = parts[0]; rest = parts[1] if len(parts) > 1 else ''
    ops = split_ops(rest)
    i = I(); i.op = op; i.text = s
    i.w = set(); i.r = set()
    i.valu = op.startswith('v_') and not op.startswith('v_mfma') and op != 'v_nop'
    i.mfma = op.startswith('v_mfma')
    i.vmem = op.startswith('buffer_') or op.startswith('global_') or op.startswith('flat_')
    i.ds = op.startswith('ds_')
    i.salu = op.startswith('s_')
    i.trans = any(op.startswith(t) for t in TRANS)
    i.dot = op.startswith('v_dot')
    i.dpp = ('_dpp' in op) or any(k in rest for k in ('row_shr','row_shl','row_ror','quad_perm','row_mirror','row_half_mirror','row_bcast','wave_sh','wave_ro','row_newbcast'))
    i.perm = op.startswith('v_permlane')
    i.sdwa = '_sdwa' in op and 'dst_sel:DWORD' not in rest
    i.lds = bool(re.search(r'\blds\b', rest)) or op.startswith('global_load_lds')
    i.states = 1
    i.a = i.b = i.c = set()
    if op == 's_nop': i.states = int(ops[0], 0) + 1
    if i.mfma:
        i.w = regs(ops[0]); i.a = regs(ops[1]); i.b = regs(ops[2]); i.c = regs(ops[3].split()[0]); i.r = i.a | i.b | i.c
        if '32x32x16' in op or '32x32x8' in op: i.passes = 8
        elif '16x16x32' in op or '16x16x16' in op: i.passes = 4
        else: raise ValueError(op)
    elif i.valu:
        if i.perm and 'swap' in op:
            i.w = regs(ops[0]) | regs(ops[1]); i.r = set(i.w)
        elif op.startswith('v_cmpx'):
            i.w = regs(ops[0]) | {('exec',0)}; i.r = regs(','.join(ops[1:]))
        elif op.startswith('v_add_co') or op.startswith('v_sub_co') or op.startswith('v_addc_co') or op.startswith('v_subb_co') or op.startswith('v_div_scale') or op.startswith('v_mad_u64'):
            i.w = regs(ops[0]) | regs(ops[1]); i.r = regs(','.join(ops[2:]))
        else:
            i.w = regs(ops[0]); i.r = regs(','.join(ops[1:]))
            if op.startswith('v_fmac') or op.startswith('v_dot2c') or op.startswith('v_writelane') or i.sdwa or i.dpp: i.r |= i.w
            if op.startswith('v_div_fmas'): i.r.add(('vcc',0))
    elif i.vmem:
        isstore = 'store' in op or ('atomic' in op)
        if op in ('buffer_inv','buffer_wbl2'): pass
        elif isstore or i.lds:
            i.r = regs(rest)
            if i.lds: i.r.add(('m0',0))
        else:
            i.w = regs(ops[0]); i.r = regs(','.join(ops[1:]))
        i.wide_store = isstore and ('x3' in op or 'x4' in op)
        if i.wide_store:
            i.sdata = regs(ops[0]) if op.startswith('buffer') else regs(ops[1])
    elif i.ds:
        if op.startswith('ds_read') or op.startswith('ds_bpermute') or op.startswith('ds_permute') or op.startswith('ds_swizzle') or '_rtn' in op:
            i.w = regs(ops[0]); i.r = regs(','.join(ops[1:]))
            if 'd16' in op: i.r |= i.w
        else:
            i.r = regs(rest)
    elif i.salu:
        if op.startswith('s_cmp') or op.startswith('s_cbranch') or op.startswith('s_branch') or op in ('s_waitcnt','s_barrier','s_nop','s_endpgm','s_sleep','s_setprio'):
            i.r = regs(rest)
        else:
            i.w = regs(ops[0]); i.r = regs(','.join(ops[1:]))
            if 'saveexec' in op: i.w.add(('exec',0))
    return i
def isv(s): return {x for x in s if x[0] in 'va' and len(x[0])==1}
def iss(s): return {x for x in s if x[0]=='s' or x[0]=='vcc'}
def need(p, c):
    n = 0
    if p.valu:
        wv = isv(p.w); ws = iss(p.w)
        if c.mfma and wv & c.r: n = max(n, 2)
        if c.valu and c.perm and wv & c.r: n = max(n, 2)
        if c.valu and c.dpp and wv & c.r: n = max(n, 2)
        if c.op.startswith('v_readfirstlane') or c.op.startswith('v_readlane'):
            if wv & c.r: n = max(n, 1)
        if p.trans and c.valu and not c.trans and wv & c.r: n = max(n, 1)
        if p.trans and (c.vmem or c.ds or c.trans) and wv & c.r: n = max(n, 1)
        if p.sdwa and c.valu and wv & (c.r | c.w): n = max(n, 1)
        if ws:
            if c.vmem and ws & c.r: n = max(n, 5)
            if c.valu and ws & c.r:
                n = max(n, 4 if (c.op.startswith('v_readlane') or c.op.startswith('v_writelane') or c.op.startswith('v_div_fmas')) else 2)
            if c.salu and ws & c.r: n = max(n, 1)
        if ('exec',0) in p.w:
            if c.mfma: n = max(n, 4)
            if c.valu and (c.dpp): n = max(n, 5)
            if c.valu and (c.perm or 'lane' in c.op): n = max(n, 4)
        if p.dot:
            if (c.valu or c.mfma or c.vmem or c.ds) and wv & (c.r | c.w):
                if not (c.op == p.op and wv == isv(c.w)): n = max(n, 3)
    if (p.ds or p.vmem) and c.valu and c.dpp: pass
    if p.salu and ('m0',0) in p.w and ('m0',0) in c.r and (c.vmem or c.ds): n = max(n, 1)
    if p.vmem and getattr(p, 'wide_store', False):
        if p.sdata & c.w: n = max(n, 2 if c.valu or c.mfma else 1)
    if p.mfma:
        P = p.passes
        tabAB = {4:8, 8:12}[P]; tabOv = {4:6, 8:10}[P]; war = {4:3, 8:7}[P]
        if c.mfma:
            if p.w & (c.a | c.b): n = max(n, tabAB)
            if p.w & c.c:
                if not (p.w == c.c and c.passes == P): n = max(n, tabOv)
            elif p.w & c.w: n = max(n, tabAB)
        elif c.valu or c.vmem or c.ds:
            if p.w & (c.r | c.w): n = max(n, tabAB)
            if c.valu and p.c & c.w: n = max(n, war)
    return n
def fix(text, verbose=False):
    out = []; hist = []
    ins = 0
    for line in text.split('\n'):
        i = parse(line)
        if i is None:
            out.append(line)
            continue
        req = 0; dist = 0
        for p in reversed(hist):
            if dist >= 20: break
            nn = need(p, i) - dist
            if nn > req: req = nn
            dist += p.states
        while req > 0:
            k = min(req, 16)
            out.append(f"s_nop {k-1}")
            hist.append(parse(f"s_nop {k-1}")); req -= k; ins += 1
        out.append(line); hist.append(i)
        if len(hist) > 40: hist = hist[-40:]
    if verbose: print('hazard nops inserted:', ins)
    return '\n'.join(out)
```

```python
import sys
from asmlib import *
import hz

NAME = 'parallel_sum__ssm_conv_s4__swiglu_ffn__prompt'
WS_H  = 0
WS_WD = 0x600000
WS_UT = 0x800000
WS_ZT = 0xB00000
WS_KR = 0xE00000
WS_Y  = 0x1400000
WS_ST = 0x1800000
WS_SIZE = 0x2000000
LOG2E = 1.4426950408889634
import struct
def f32(x): return '0x%08x' % struct.unpack('<I', struct.pack('<f', x))[0]

OPT = dict(stamp=0, st='sc1', rot=1, spin=20000)

def vr(b, n): return f"v[{b}:{b+n-1}]" if n > 1 else f"v{b}"

def stamp_begin(a):
    if OPT['stamp']:
        a("s_memrealtime s[96:97]\ns_memtime s[84:85]")
def stamp_mid(a, k):
    if OPT['stamp']:
        a(f"s_memrealtime s[{88+2*k}:{89+2*k}]")
def stamp_end(a, kern, wsrd, wave_s):
    if OPT['stamp']:
        a("s_waitcnt vmcnt(0)")
        a("s_memrealtime s[98:99]\ns_memtime s[86:87]")
        a("s_waitcnt lgkmcnt(0)\ns_sub_u32 s86, s86, s84")
        a(f"s_lshl_b32 s100, s2, 2\ns_add_u32 s100, s100, s{wave_s}\ns_lshl_b32 s100, s100, 5\ns_add_u32 s100, s100, {WS_ST + kern*0x40000}")
        a("v_mov_b32 v0, s96\nv_mov_b32 v1, s98\nv_mov_b32 v2, s88\nv_mov_b32 v3, s90\nv_mov_b32 v4, s92\nv_mov_b32 v5, s94\nv_mov_b32 v6, s86\nv_mov_b32 v7, 0\nv_mov_b32 v8, s100")
        a(f"buffer_store_dwordx4 v[0:3], v8, s[{wsrd}:{wsrd+3}], 0 offen")
        a(f"buffer_store_dwordx4 v[4:7], v8, s[{wsrd}:{wsrd+3}], 0 offen offset:16")

def interleave(mf, fill, per=None):
    out = []
    n = len(mf)
    k = 0
    tot = len(fill)
    for i, m in enumerate(mf):
        out.append(m)
        tgt = (tot*(i+1) + n - 1)//n if per is None else min(tot, per*(i+1))
        if i == n-1: tgt = tot
        while k < tgt:
            out.append(fill[k]); k += 1
    return out

def gemm1(a):
    ST = OPT['st']
    a("s_load_dwordx2 s[4:5], s[0:1], 0")
    a("s_load_dwordx4 s[8:11], s[0:1], 80")
    a("s_load_dwordx2 s[6:7], s[0:1], 120")
    a("v_lshrrev_b32 v1, 6, v0")
    a("v_and_b32 v0, 63, v0")
    a("v_readfirstlane_b32 s24, v1")
    a("s_and_b32 s25, s2, 7\ns_lshr_b32 s26, s2, 3")
    a("s_and_b32 s27, s25, 1\ns_lshl_b32 s27, s27, 3\ns_and_b32 s28, s26, 7\ns_add_u32 s27, s27, s28")
    a("s_lshr_b32 s28, s25, 1\ns_lshl_b32 s28, s28, 2\ns_lshr_b32 s29, s26, 3\ns_add_u32 s28, s28, s29")
    a("s_and_b32 s30, s24, 1\ns_lshr_b32 s31, s24, 1")
    if OPT['rot'] == 1:
        a("s_and_b32 s32, s26, 7\ns_mul_i32 s32, s32, 5\ns_lshr_b32 s32, s32, 2")
        a("s_mul_i32 s33, s29, 5\ns_lshr_b32 s33, s33, 1\ns_add_u32 s32, s32, s33")
        a("s_cmp_ge_u32 s32, 10\ns_cselect_b32 s33, 10, 0\ns_sub_u32 s32, s32, s33")
    else:
        a("s_mov_b32 s32, 0")
    XD, WD, XA, WA = 2, 6, 9, 17
    T = 24
    FA, FB = 32, 52
    SUM, SQ, CS = 72, 73, 74
    ACC = 80
    XBASE = 49152
    a(f"v_lshrrev_b32 v{T}, 3, v0")
    a(f"s_lshl_b32 s33, s27, 7\ns_lshl_b32 s34, s24, 5\ns_add_u32 s33, s33, s34")
    a(f"v_add_u32 v{T}, s33, v{T}")
    a(f"v_mul_u32_u24 v{T}, 1280, v{T}")
    a(f"v_lshrrev_b32 v{T+1}, 4, v0")
    a(f"v_and_b32 v{T+2}, 7, v0")
    a(f"v_xor_b32 v{T+1}, v{T+1}, v{T+2}")
    for i in range(4):
        a(f"v_xor_b32 v{T+2}, {4*(i&1)}, v{T+1}")
        a(f"v_lshl_add_u32 v{XD+i}, v{T+2}, 4, v{T}")
        a(f"v_add_u32 v{XD+i}, {i*8*1280}, v{XD+i}")
    a(f"s_mul_i32 s33, s28, 192\ns_mul_i32 s34, s30, {16*3072}\ns_add_u32 s33, s33, s34")
    a("s_lshl_b32 s34, s31, 1")
    for i in range(3):
        a(f"v_add_u32 v{T}, {64*i}, v0")
        a(f"v_mul_u32_u24 v{T+1}, 5462, v{T}\nv_lshrrev_b32 v{T+1}, 16, v{T+1}")
        a(f"v_mul_u32_u24 v{T+2}, 12, v{T+1}\nv_sub_u32 v{T+2}, v{T}, v{T+2}")
        a(f"v_xor_b32 v{T+2}, s34, v{T+2}")
        a(f"v_mul_u32_u24 v{T+1}, 3072, v{T+1}")
        a(f"v_lshl_add_u32 v{T+1}, v{T+2}, 4, v{T+1}")
        a(f"v_add_u32 v{WD+i}, s33, v{T+1}")
    a("s_waitcnt lgkmcnt(0)")
    srd(a, 12, 4, 2621440)
    a("s_cmp_eq_u32 s31, 0\ns_cselect_b32 s16, s8, s10\ns_cselect_b32 s17, s9, s11\ns_mov_b32 s18, 1966080\ns_mov_b32 s19, 0x20000")
    srd(a, 20, 6, WS_SIZE)
    a(f"s_lshl_b32 s36, s24, 12\ns_add_u32 s36, s36, {XBASE}")
    a("s_mul_i32 s37, s24, 3072")
    a("s_lshl_b32 s38, s32, 7\ns_mul_i32 s39, s32, 196608")
    def dma_x(slot):
        o = []
        for i in range(4):
            o.append(f"s_add_u32 m0, s36, {slot*16384 + i*1024}\ns_nop 0\nbuffer_load_dwordx4 v{XD+i}, s[12:15], s38 offen lds")
        o[-1] += "\ns_add_u32 s38, s38, 128\ns_cmp_eq_u32 s38, 1280\ns_cselect_b32 s38, 0, s38"
        return o
    def dma_w(slot):
        o = []
        for i in range(3):
            o.append(f"s_add_u32 m0, s37, {slot*12288 + i*1024}\ns_nop 0\nbuffer_load_dwordx4 v{WD+i}, s[16:19], s39 offen lds")
        o[-1] += "\ns_add_u32 s39, s39, 98304\ns_cmp_eq_u32 s39, 1966080\ns_cselect_b32 s39, 0, s39"
        return o
    for s in dma_w(0) + dma_x(0) + dma_w(1) + dma_w(2): a(s)
    a(f"v_and_b32 v{T}, 31, v0")
    a(f"v_lshrrev_b32 v{T+1}, 5, v0")
    a(f"v_lshrrev_b32 v{T+2}, 1, v{T}\nv_and_b32 v{T+2}, 7, v{T+2}")
    a(f"v_xor_b32 v{T+2}, v{T+2}, v{T+1}")
    a("s_lshl_b32 s33, s30, 1")
    a(f"v_xor_b32 v{T+2}, s33, v{T+2}")
    a(f"s_lshl_b32 s33, s30, 13\ns_lshl_b32 s34, s31, 12\ns_add_u32 s33, s33, s34\ns_add_u32 s33, s33, {XBASE}")
    a(f"v_lshl_add_u32 v{T+3}, v{T}, 7, s33")
    for st in range(4):
        a(f"v_xor_b32 v{T+4}, {2*st}, v{T+2}")
        a(f"v_lshl_add_u32 v{XA+st}, v{T+4}, 4, v{T+3}")
        a(f"v_xor_b32 v{XA+4+st}, 4096, v{XA+st}")
    a(f"v_lshrrev_b32 v{T}, 4, v0\nv_and_b32 v{T}, 1, v{T}")
    a(f"v_lshrrev_b32 v{T+2}, 2, v0\nv_and_b32 v{T+2}, 3, v{T+2}")
    a(f"v_lshl_add_u32 v{T+2}, v{T+1}, 3, v{T+2}")
    a(f"v_mul_u32_u24 v{T+2}, 192, v{T+2}")
    a(f"v_mul_u32_u24 v{T+3}, 6144, v{T}")
    a(f"v_add_u32 v{T+2}, v{T+2}, v{T+3}")
    a(f"v_and_b32 v{T+3}, 1, v0\nv_lshlrev_b32 v{T+3}, 4, v{T+3}")
    a(f"v_and_b32 v{T+4}, 2, v0\nv_lshlrev_b32 v{T+4}, 2, v{T+4}")
    a(f"v_add3_u32 v{T+2}, v{T+2}, v{T+3}, v{T+4}")
    a("s_mul_i32 s33, s31, 3\ns_mul_i32 s34, s30, 3072\ns_sub_u32 s35, 3072, s34")
    for mb in range(3):
        a(f"s_add_u32 s40, s33, {mb}")
        a(f"v_xor_b32 v{T+3}, s40, v{T}")
        a(f"v_lshl_add_u32 v{T+3}, v{T+3}, 5, v{T+2}")
        a(f"v_add_u32 v{WA+mb}, s34, v{T+3}")
        a(f"v_add_u32 v{WA+3+mb}, s35, v{T+3}")
    for i in range(96): a(f"v_mov_b32 v{ACC+i}, 0")
    for i in range(5): a(f"v_mov_b32 v{SUM+i}, 0")
    for i in range(20): a(f"v_mov_b32 v{FB+i}, 0")
    a("s_mov_b32 s41, 0x3f803f80")
    def reads(F, h, sub):
        st = 2*(h & 1) + sub
        xs = ((h >> 1) & 1)*16384; wsl = (h & 3)*12288
        o = []
        o.append(f"ds_read_b64_tr_b16 {vr(F+8,2)}, v{WA+3*sub} offset:{wsl}")
        o.append(f"ds_read_b64_tr_b16 {vr(F+10,2)}, v{WA+3*sub} offset:{wsl+768}")
        o.append(f"ds_read_b128 {vr(F,4)}, v{XA+st} offset:{xs}")
        o.append(f"ds_read_b128 {vr(F+4,4)}, v{XA+4+st} offset:{xs}")
        for mb in (1, 2):
            o.append(f"ds_read_b64_tr_b16 {vr(F+8+4*mb,2)}, v{WA+3*sub+mb} offset:{wsl}")
            o.append(f"ds_read_b64_tr_b16 {vr(F+10+4*mb,2)}, v{WA+3*sub+mb} offset:{wsl+768}")
        return o
    def mfmas(F):
        o = []
        for mb in range(3):
            for nb in range(2):
                c = ACC + (mb*2+nb)*16
                o.append(f"v_mfma_f32_32x32x16_bf16 {vr(c,16)}, {vr(F+8+4*mb,4)}, {vr(F+4*nb,4)}, {vr(c,16)}")
        return o
    def xstats(F):
        o = []
        if OPT.get('nodot'): return o
        for i in range(4):
            o.append(f"v_dot2c_f32_bf16 v{SUM}, s41, v{F+i}")
            o.append(f"v_dot2c_f32_bf16 v{SQ}, v{F+i}, v{F+i}")
        return o
    def cstats(F):
        o = []
        if OPT.get('nodot'): return o
        for i in range(4):
            for mb in range(3):
                o.append(f"v_dot2c_f32_bf16 v{CS+mb}, s41, v{F+8+4*mb+i}")
        return o
    def merge(x, y):
        o = []; i = j = 0
        while i < len(x) or j < len(y):
            if i < len(x): o.append(x[i]); i += 1
            if j < len(y): o.append(y[j]); j += 1
        return o
    def place(mf, first, spread, rest):
        n = len(mf)
        gaps = [[] for _ in range(n)]
        for k, t in enumerate(first): gaps[min(n-1, k//3)].append(t)
        if OPT.get('nords'): gaps = [[] for _ in range(n)]
        if OPT.get('nomfma'): mf = ['s_nop 0']*n
        for k, t in enumerate(spread): gaps[(k*n)//len(spread) + (n//len(spread))//2].append(t)
        for t in rest:
            g = min(range(n), key=lambda i: (len(gaps[i]), -i))
            gaps[g].append(t)
        o = []
        for m, g in zip(mf, gaps): o.append(m); o += g
        return o
    def half(h, last_iter):
        hh = h & 3
        e = h & ~1
        seq = dma_x(((e >> 1) + 1) & 1) + dma_w((e + 3) & 3) + dma_w((e + 4) & 3)
        if last_iter:
            seq = seq[:7] if hh < 2 else []
        dm = seq[:5] if h % 2 == 0 else seq[5:]
        if OPT.get('nodma'): dm = []
        if OPT.get('nox'): dm = [d for d in dm if 's[12:15]' not in d]
        if OPT.get('now'): dm = [d for d in dm if 's[16:19]' not in d]
        if not last_iter: N = 6 if h % 2 == 0 else 8
        else: N = {0: 6, 1: 8, 2: 3, 3: 0}[hh]
        d1, d2 = dm[:(len(dm)+1)//2], dm[(len(dm)+1)//2:]
        a(f"s_waitcnt vmcnt({N}) lgkmcnt(0)")
        if not OPT.get('nobar'): a("s_barrier")
        for s in place(mfmas(FB), reads(FA, h, 0), d1, xstats(FB)): a(s)
        a("s_waitcnt lgkmcnt(0)")
        for s in place(mfmas(FA), reads(FB, h, 1), d2, merge(cstats(FA), xstats(FA))): a(s)
    a("s_mov_b32 s42, 0")
    if OPT.get('prio'): a("s_setprio 2")
    a("L_g1_loop:")
    for h in range(4):
        half(h, False)
        if h == 0: stamp_mid(a, 0) if False else None
    if OPT['stamp']:
        a("s_cmp_lg_u32 s42, 0\ns_cbranch_scc1 L_g1_ns")
        stamp_mid(a, 2)
        a("L_g1_ns:\ns_cmp_lg_u32 s42, 2\ns_cbranch_scc1 L_g1_ns2")
        stamp_mid(a, 3)
        a("L_g1_ns2:")
    a("s_add_u32 s42, s42, 1\ns_cmp_lt_u32 s42, 4\ns_cbranch_scc1 L_g1_loop")
    for h in range(16, 20): half(h, True)
    a("s_waitcnt lgkmcnt(0)")
    for s in interleave(mfmas(FB), xstats(FB)): a(s)
    stamp_mid(a, 0)
    t0, t1, t2, t3 = T, T+1, T+2, T+3
    a(f"v_mov_b32 v{t0}, v{SUM}\nv_mov_b32 v{t1}, v{SQ}")
    a(f"v_permlane32_swap_b32 v{SUM}, v{t0}\nv_permlane32_swap_b32 v{SQ}, v{t1}")
    a(f"v_add_f32 v{SUM}, v{SUM}, v{t0}\nv_add_f32 v{SQ}, v{SQ}, v{t1}")
    a(f"v_mul_f32 v{SUM}, {f32(1/640)}, v{SUM}\nv_mul_f32 v{SQ}, {f32(1/640)}, v{SQ}")
    a(f"v_fma_f32 v{SQ}, -v{SUM}, v{SUM}, v{SQ}\nv_max_f32 v{SQ}, 0, v{SQ}")
    NM0, S0, NM1, S1 = FA, FA+1, FA+4, FA+5
    a(f"v_cvt_pk_bf16_f32 v{NM0}, -v{SUM}, -v{SUM}")
    a(f"v_cvt_pk_bf16_f32 v{t0}, v{SQ}, v{SQ}\nv_and_b32 v{t0}, 0xffff0000, v{t0}")
    a(f"v_add_f32 v{t0}, {f32(1e-5)}, v{t0}")
    a(f"v_cvt_pk_bf16_f32 v{t0}, v{t0}, v{t0}\nv_and_b32 v{t0}, 0xffff0000, v{t0}")
    a(f"v_sqrt_f32 v{t0}, v{t0}")
    a(f"v_cvt_pk_bf16_f32 v{t0}, v{t0}, v{t0}\nv_and_b32 v{S0}, 0xffff0000, v{t0}")
    a(f"s_lshl_b32 s33, s24, 9")
    a(f"v_lshl_add_u32 v{t1}, v0, 3, s33")
    a(f"ds_write_b64 v{t1}, {vr(NM0,2)}")
    a(f"v_lshlrev_b32 v{t2}, 1, v{t1}")
    a(f"ds_write_b96 v{t2}, {vr(CS,3)} offset:2048")
    a(f"v_xor_b32 v{t1}, 1024, v{t1}")
    a(f"v_xor_b32 v{t2}, 1024, v{t2}")
    a("s_waitcnt lgkmcnt(0)\ns_barrier")
    a(f"ds_read_b64 {vr(NM1,2)}, v{t1}")
    a(f"ds_read_b96 {vr(T+4,3)}, v{t2} offset:2048")
    C1, I2 = FB, FB+4
    a("s_waitcnt lgkmcnt(0)")
    for nb, S in ((0, S0), (1, S1)):
        a(f"v_rcp_f32 v{t0}, v{S}")
        a(f"v_mul_f32 v{I2+2*nb}, v{S}, v{S}\nv_mul_f32 v{I2+2*nb+1}, v{S}, v{S}")
        a(f"v_mul_f32 v{C1+2*nb}, {f32(-LOG2E)}, v{t0}\nv_mul_f32 v{C1+2*nb+1}, {f32(-LOG2E)}, v{t0}")
    for r in (1, 2, 3, 5, 6, 7): a(f"v_mov_b32 v{FA+r}, 0")
    for mb in range(3):
        w = FA + 8 + 4*mb
        a(f"v_add_f32 v{CS+mb}, v{CS+mb}, v{T+4+mb}")
        a(f"v_cvt_pk_bf16_f32 v{t0}, v{CS+mb}, v{CS+mb}\nv_and_b32 v{t0}, 0xffff0000, v{t0}")
        a(f"v_sub_f32 v{t0}, v{CS+mb}, v{t0}")
        a(f"v_cvt_pk_bf16_f32 v{w}, v{CS+mb}, v{t0}")
        for r in (1, 2, 3): a(f"v_mov_b32 v{w+r}, 0")
    for s in mfmas(FA): a(s)
    a(f"v_and_b32 v{t0}, 31, v0")
    a(f"s_lshl_b32 s33, s27, 7\ns_lshl_b32 s34, s30, 6\ns_add_u32 s33, s33, s34\ns_lshl_b32 s34, s31, 5\ns_add_u32 s33, s33, s34")
    a(f"v_add_u32 v{t0}, s33, v{t0}")
    a(f"v_lshrrev_b32 v{t2}, 5, v0\nv_lshlrev_b32 v{t2}, 8, v{t2}")
    a(f"v_and_b32 v{t3}, 15, v0\nv_lshl_add_u32 v{t2}, v{t3}, 4, v{t2}")
    a("s_mov_b32 s35, 49152")
    for nb in range(2):
        if nb: a(f"v_xor_b32 v{t0}, 32, v{t0}")
        a(f"v_lshrrev_b32 v{t1}, 4, v{t0}")
        a(f"v_mad_u32_u24 v{XD+nb}, v{t1}, s35, v{t2}")
    a("s_mul_i32 s33, s28, 6\ns_mul_i32 s34, s31, 3\ns_add_u32 s33, s33, s34\ns_lshl_b32 s33, s33, 9")
    E = FB + 8
    O = [FA, FA+4, FA+8, FA+12, FA+16, T+4]
    k = 0
    for mb in range(3):
        for nb in range(2):
            c = ACC + (mb*2+nb)*16
            sel = f"op_sel:[0,{nb}] op_sel_hi:[1,{nb}]"
            for i in range(0, 8, 2):
                a(f"v_pk_mul_f32 {vr(E+i,2)}, {vr(c+i,2)}, {vr(C1+2*nb,2)}")
            for i in range(8): a(f"v_exp_f32 v{E+i}, v{E+i}")
            for i in range(0, 8, 2):
                a(f"v_pk_mul_f32 {vr(c+i,2)}, {vr(c+i,2)}, {vr(c+8+i,2)}")
            for i in range(0, 8, 2):
                a(f"v_pk_fma_f32 {vr(E+i,2)}, {vr(E+i,2)}, {vr(I2+2*nb,2)}, {vr(I2+2*nb,2)}")
            for i in range(8): a(f"v_rcp_f32 v{E+i}, v{E+i}")
            for i in range(0, 8, 2):
                a(f"v_pk_mul_f32 {vr(c+i,2)}, {vr(c+i,2)}, {vr(E+i,2)}")
            o = O[k]; k += 1
            for i in range(4):
                a(f"v_cvt_pk_bf16_f32 v{o+i}, v{c+2*i}, v{c+2*i+1}")
            a(f"buffer_store_dwordx4 {vr(o,4)}, v{XD+nb}, s[20:23], s33 offen offset:{mb*512} {ST}")
    stamp_mid(a, 1)
    stamp_end(a, 0, 20, 24)
    a("s_endpgm")

def load_rows_swz(a, T):
    a(f"v_lshrrev_b32 v{T}, 3, v0")
    a("s_lshl_b32 s33, s24, 3")
    a(f"v_add_u32 v{T}, s33, v{T}")
    a(f"v_mul_u32_u24 v{T+1}, 1280, v{T}")
    a(f"v_and_b32 v{T+2}, 7, v0")
    a(f"v_lshl_add_u32 v1, v{T+2}, 4, v{T+1}")
    a(f"v_and_b32 v{T+3}, 3, v{T}")
    a("s_and_b32 s33, s24, 1\ns_lshl_b32 s33, s33, 2")
    a(f"v_or_b32 v{T+3}, s33, v{T+3}")
    a(f"v_lshlrev_b32 v{T+3}, 1, v{T+3}")
    a(f"v_xor_b32 v{T+2}, v{T+2}, v{T+3}")
    a(f"v_lshl_add_u32 v2, v{T+2}, 4, v{T+1}")
    a(f"v_xor_b32 v{T+2}, 8, v{T+2}")
    a(f"v_lshl_add_u32 v3, v{T+2}, 4, v{T+1}")

def ln(a, wg0):
    ST = OPT['st']
    a("s_load_dwordx2 s[4:5], s[0:1], 0")
    a("s_load_dwordx2 s[8:9], s[0:1], 64")
    a("s_load_dwordx2 s[6:7], s[0:1], 120")
    a("v_lshrrev_b32 v1, 6, v0")
    a("v_and_b32 v0, 63, v0")
    a("v_readfirstlane_b32 s24, v1")
    a(f"s_sub_u32 s25, s2, {wg0}")
    T = 4
    load_rows_swz(a, T)
    a(f"v_and_b32 v{T}, 7, v0\nv_lshlrev_b32 v{T}, 4, v{T}")
    a("s_mul_i32 s26, s25, 40960")
    a("s_waitcnt lgkmcnt(0)")
    srd(a, 12, 4, 2621440)
    srd(a, 16, 8, 1280)
    srd(a, 20, 6, WS_SIZE)
    X, D, F = 16, 56, 96
    for i in range(10): a(f"buffer_load_dwordx4 {vr(X+4*i,4)}, v1, s[12:15], s26 offen offset:{128*i}")
    for i in range(10): a(f"buffer_load_dwordx4 {vr(D+4*i,4)}, v{T}, s[16:19], 0 offen offset:{128*i}")
    S = 8
    a(f"v_mov_b32 v{S}, 0\nv_mov_b32 v{S+1}, 0")
    for i in range(10):
        a(f"s_waitcnt vmcnt({19-i})")
        for r in range(4):
            k = 4*i + r
            a(f"v_lshlrev_b32 v{F+2*k}, 16, v{X+k}\nv_and_b32 v{F+2*k+1}, 0xffff0000, v{X+k}")
            a(f"v_pk_add_f32 {vr(S,2)}, {vr(S,2)}, {vr(F+2*k,2)}")
    def red8(r):
        a(f"v_add_f32 v{r}, v{r}, v{r+1}")
        a(f"v_add_f32_dpp v{r}, v{r}, v{r} quad_perm:[1,0,3,2] row_mask:0xf bank_mask:0xf")
        a(f"v_add_f32_dpp v{r}, v{r}, v{r} quad_perm:[2,3,0,1] row_mask:0xf bank_mask:0xf")
        a(f"v_add_f32_dpp v{r}, v{r}, v{r} row_half_mirror row_mask:0xf bank_mask:0xf")
    red8(S)
    M = 10
    a(f"v_mul_f32 v{M}, {f32(1/640)}, v{S}")
    a(f"v_mov_b32 v{S}, 0\nv_mov_b32 v{S+1}, 0")
    for k in range(40):
        a(f"v_pk_add_f32 v[12:13], {vr(F+2*k,2)}, {vr(M,2)} op_sel:[0,0] op_sel_hi:[1,0] neg_lo:[0,1] neg_hi:[0,1]")
        a(f"v_pk_fma_f32 {vr(S,2)}, v[12:13], v[12:13], {vr(S,2)}")
    red8(S)
    a(f"v_mul_f32 v{S}, {f32(1/640)}, v{S}")
    a(f"v_cvt_pk_bf16_f32 v{M}, v{M}, v{M}\nv_and_b32 v{M}, 0xffff0000, v{M}")
    a(f"v_cvt_pk_bf16_f32 v{S}, v{S}, v{S}\nv_and_b32 v{S}, 0xffff0000, v{S}")
    a(f"v_add_f32 v{S}, {f32(1e-5)}, v{S}")
    a(f"v_cvt_pk_bf16_f32 v{S}, v{S}, v{S}\nv_and_b32 v{S}, 0xffff0000, v{S}")
    a(f"v_sqrt_f32 v{S}, v{S}")
    a(f"v_cvt_pk_bf16_f32 v{S}, v{S}, v{S}\nv_and_b32 v{S}, 0xffff0000, v{S}")
    a(f"v_rcp_f32 v{M+1}, v{S}")
    a(f"v_mov_b32 v8, v{M+1}\nv_mov_b32 v9, v{M+1}")
    a("s_waitcnt vmcnt(0)")
    for k in range(40):
        a(f"v_pk_add_f32 v[12:13], {vr(F+2*k,2)}, {vr(M,2)} op_sel:[0,0] op_sel_hi:[1,0] neg_lo:[0,1] neg_hi:[0,1]")
        a(f"v_cvt_pk_bf16_f32 v12, v12, v13")
        a(f"v_and_b32 v13, 0xffff0000, v12\nv_lshlrev_b32 v12, 16, v12")
        lv = OPT.get('lnv', 2)
        if lv == 0: a(f"v_pk_mul_f32 v[12:13], v[12:13], {vr(M,2)} op_sel:[0,1] op_sel_hi:[1,1]")
        if lv == 1: a(f"s_nop 1\nv_pk_mul_f32 v[12:13], v[12:13], {vr(M,2)} op_sel:[0,1] op_sel_hi:[1,1]")
        if lv == 2: a(f"v_pk_mul_f32 v[12:13], v[12:13], v[8:9]")
        if lv == 3: a(f"v_pk_mul_f32 v[12:13], {vr(M,2)}, v[12:13] op_sel:[1,0] op_sel_hi:[1,1]")
        if lv == 4: a(f"v_pk_mul_f32 v[12:13], v[12:13], {vr(M,2)} op_sel:[0,1] op_sel_hi:[1,1]\ns_nop 1")
        if lv == 5: a(f"v_pk_mul_f32 v[14:15], v[12:13], {vr(M,2)} op_sel:[0,1] op_sel_hi:[1,1]\nv_mov_b32 v12, v14\nv_mov_b32 v13, v15")
        a(f"v_cvt_pk_bf16_f32 v{X+k}, v12, v13")
        a(f"v_lshlrev_b32 v12, 16, v{X+k}\nv_and_b32 v13, 0xffff0000, v{X+k}")
        a(f"v_lshlrev_b32 v14, 16, v{D+k}\nv_and_b32 v15, 0xffff0000, v{D+k}")
        a(f"v_pk_fma_f32 v[12:13], v[12:13], v[14:15], {vr(F+2*k,2)}")
        a(f"v_cvt_pk_bf16_f32 v{D+k}, v12, v13")
        if k % 4 == 3:
            i = k // 4
            a(f"ds_write_b128 v{2+(i&1)}, {vr(X+4*i,4)} offset:{(i>>1)*256}")
            a(f"ds_write_b128 v{2+(i&1)}, {vr(D+4*i,4)} offset:{40960+(i>>1)*256}")
    a(f"v_lshrrev_b32 v{T}, 4, v0")
    a(f"v_lshrrev_b32 v{T+1}, 2, v0\nv_and_b32 v{T+1}, 3, v{T+1}")
    a(f"v_lshl_add_u32 v{T+2}, v{T}, 3, v{T+1}\nv_mul_u32_u24 v{T+2}, 1280, v{T+2}")
    a(f"v_and_b32 v{T+3}, 3, v0\nv_lshl_add_u32 v{T+2}, v{T+3}, 3, v{T+2}")
    a(f"v_and_b32 v{T+3}, 1, v{T}\nv_lshl_add_u32 v{T+3}, v{T+3}, 2, v{T+1}")
    a("s_lshl_b32 s33, s24, 1")
    a(f"v_xor_b32 v{T+3}, s33, v{T+3}")
    a(f"v_lshl_add_u32 v8, v{T+3}, 5, v{T+2}")
    a(f"v_xor_b32 v{T+3}, 1, v{T+3}")
    a(f"v_lshl_add_u32 v9, v{T+3}, 5, v{T+2}")
    a(f"v_and_b32 v10, 15, v0\nv_lshlrev_b32 v10, 6, v10\nv_lshl_add_u32 v10, v{T}, 4, v10")
    a("s_lshl_b32 s33, s24, 11\ns_add_u32 s26, s26, s33")
    a("s_waitcnt lgkmcnt(0)\ns_barrier")
    R = 16
    n = 0
    for ten in range(2):
        for k in range(5):
            for b in range(2):
                r = R + 4*n; n += 1
                a(f"ds_read_b64_tr_b16 {vr(r,2)}, v{8+b} offset:{ten*40960 + k*256}")
                a(f"ds_read_b64_tr_b16 {vr(r+2,2)}, v{8+b} offset:{ten*40960 + k*256 + 5120}")
            if n % 4 == 0 or True:
                a("s_waitcnt lgkmcnt(0)")
                a(f"s_add_u32 s27, s26, {(WS_UT if ten == 0 else WS_ZT) + k*8192}")
                for b in range(2):
                    r = R + 4*(n-2+b)
                    a(f"buffer_store_dwordx4 {vr(r,4)}, v10, s[20:23], s27 offen offset:{b*1024} {ST}")
    stamp_end(a, 0, 20, 24)
    a("s_endpgm")

def wdprep(a, wg0):
    ST = OPT['st']
    a("s_load_dwordx2 s[4:5], s[0:1], 96")
    a("s_load_dwordx2 s[6:7], s[0:1], 120")
    a("v_lshrrev_b32 v1, 6, v0")
    a("v_and_b32 v0, 63, v0")
    a("v_readfirstlane_b32 s24, v1")
    a(f"s_sub_u32 s25, s2, {wg0}")
    T = 4
    load_rows_swz(a, T)
    a("s_mul_i32 s26, s25, 40960")
    a("s_waitcnt lgkmcnt(0)")
    srd(a, 12, 4, 1966080)
    srd(a, 20, 6, WS_SIZE)
    X = 16
    for i in range(10): a(f"buffer_load_dwordx4 {vr(X+4*i,4)}, v1, s[12:15], s26 offen offset:{128*i}")
    a(f"v_lshrrev_b32 v{T}, 4, v0")
    a(f"v_lshrrev_b32 v{T+1}, 2, v0\nv_and_b32 v{T+1}, 3, v{T+1}")
    a(f"v_lshl_add_u32 v8, v{T}, 3, v{T+1}\nv_mul_u32_u24 v8, 1280, v8")
    a(f"v_and_b32 v9, 1, v{T}\nv_lshl_add_u32 v9, v9, 2, v{T+1}\nv_lshlrev_b32 v9, 5, v9")
    a("s_mul_i32 s33, s24, 320")
    a(f"v_and_b32 v{T+2}, 3, v0")
    a(f"v_lshl_add_u32 v10, v{T+2}, 4, s33")
    a(f"v_lshl_add_u32 v11, v{T+2}, 3, s33")
    a("v_lshlrev_b32 v12, 4, v0")
    for i in range(10):
        a(f"s_waitcnt vmcnt({9-i})")
        a(f"ds_write_b128 v{2+(i&1)}, {vr(X+4*i,4)} offset:{(i>>1)*256}")
    a("s_waitcnt lgkmcnt(0)\ns_barrier")
    R = 56
    for c2 in range(2):
        for j in range(5):
            r = R + 4*(c2*5+j)
            if j < 4: a(f"v_add_u32 v13, {160*c2 + 64*(j>>1) + 8*(j&1)}, v10")
            else: a(f"v_add_u32 v13, {160*c2 + 128}, v11")
            a("v_xor_b32 v13, v13, v9\nv_add_u32 v13, v13, v8")
            a(f"ds_read_b64_tr_b16 {vr(r,2)}, v13")
            a(f"ds_read_b64_tr_b16 {vr(r+2,2)}, v13 offset:5120")
        a("s_waitcnt lgkmcnt(0)")
        a(f"s_lshl_b32 s33, s24, 1\ns_add_u32 s33, s33, {c2}\ns_mul_i32 s33, s33, 48\ns_add_u32 s33, s33, s25\ns_mul_i32 s33, s33, 5120\ns_add_u32 s33, s33, {WS_WD}")
        a("s_add_u32 s34, s33, 4096")
        for j in range(5):
            r = R + 4*(c2*5+j)
            if j < 4: a(f"buffer_store_dwordx4 {vr(r,4)}, v12, s[20:23], s33 offen offset:{j*1024} {ST}")
            else: a(f"buffer_store_dwordx4 {vr(r,4)}, v12, s[20:23], s34 offen {ST}")
    stamp_end(a, 0, 20, 24)
    a("s_endpgm")

def cmul(d, x, y, yi):
    return [f"v_pk_mul_f32 {vr(d,2)}, {vr(x,2)}, {vr(y,2)} op_sel:[0,0] op_sel_hi:[1,0]",
            f"v_pk_fma_f32 {vr(d,2)}, {vr(x,2)}, {vr(yi,2)}, {vr(d,2)} op_sel:[1,0,0] op_sel_hi:[0,0,1] neg_lo:[1,0,0]"]

def kgen(a, wg0):
    ST = OPT['st']
    a("s_load_dwordx8 s[44:51], s[0:1], 8")
    a("s_load_dwordx4 s[52:55], s[0:1], 40")
    a("s_load_dwordx2 s[4:5], s[0:1], 56")
    a("s_load_dwordx2 s[6:7], s[0:1], 120")
    a("v_lshrrev_b32 v1, 6, v0")
    a("v_and_b32 v0, 63, v0")
    a("v_readfirstlane_b32 s24, v1")
    a(f"s_sub_u32 s25, s2, {wg0}\ns_lshl_b32 s25, s25, 2\ns_add_u32 s25, s25, s24")
    a("s_mul_i32 s26, s25, 384")
    a("v_lshlrev_b32 v1, 1, v0")
    a("s_lshl_b32 s27, s25, 1")
    a("v_mov_b32 v2, s27")
    a("s_waitcnt lgkmcnt(0)")
    for k in range(6): srd(a, 56+4*k, 44+2*k, 245760)
    srd(a, 12, 4, 1280)
    srd(a, 20, 6, WS_SIZE)
    P = 8
    a("buffer_load_ushort v3, v2, s[12:15], 0 offen")
    for s in range(3):
        for k in range(6):
            a(f"buffer_load_ushort v{P+6*s+k}, v1, s[{56+4*k}:{59+4*k}], s26 offen offset:{128*s}")
    AD = 26
    RA = 42
    a("s_mul_i32 s28, s24, 16384")
    a(f"v_lshl_add_u32 v{AD}, v0, 2, s28")
    for j in range(1, 16): a(f"v_xor_b32 v{AD+j}, {16*j}, v{AD}")
    a("v_and_b32 v4, 15, v0\nv_lshrrev_b32 v5, 4, v0")
    a("v_lshl_add_u32 v6, v4, 8, s28")
    a("v_xor_b32 v5, v5, v4")
    for ks in range(4):
        a(f"v_xor_b32 v7, {4*ks}, v5")
        a(f"v_lshl_add_u32 v{RA+ks}, v7, 4, v6")
    ACC = 48
    for i in range(12): a(f"v_mov_b32 v{ACC+i}, 0")
    H = 60
    G = 92
    PW = 96
    E1, E16 = 112, 114
    A2, B2 = 116, 117
    TM = 118
    CV = 126
    FR = 132
    IM = 132
    a("s_waitcnt vmcnt(18)")
    a("v_lshlrev_b32 v3, 16, v3")
    a(f"v_mul_f32 v3, {f32(LOG2E)}, v3\nv_exp_f32 v3, v3")
    a("v_cvt_pk_bf16_f32 v3, v3, v3\nv_and_b32 v3, 0xffff0000, v3")
    def ev(d, x):
        xs = f32(float(x))
        return [f"v_mul_f32 v{TM}, {xs}, v{A2}", f"v_mul_f32 v{TM+1}, {xs}, v{B2}", f"v_exp_f32 v{TM}, v{TM}",
                f"v_fract_f32 v{TM+1}, v{TM+1}", f"v_cos_f32 v{d}, v{TM+1}", f"v_sin_f32 v{d+1}, v{TM+1}",
                f"v_pk_mul_f32 {vr(d,2)}, {vr(d,2)}, {vr(TM,2)} op_sel:[0,0] op_sel_hi:[1,0]"]
    for s in range(3):
        p = P + 6*s
        a(f"s_waitcnt vmcnt({12-6*s})")
        for k in range(6): a(f"v_lshlrev_b32 v{p+k}, 16, v{p+k}")
        a(f"v_mul_f32 v{A2}, v3, v{p}\nv_mul_f32 v{B2}, v3, v{p+1}")
        a(f"v_mul_f32 v{A2}, {f32(LOG2E)}, v{A2}\nv_mul_f32 v{B2}, 0.15915494, v{B2}")
        a(f"v_mul_f32 v{p+2}, v3, v{p+2}\nv_mul_f32 v{p+3}, v3, v{p+3}")
        a(f"v_mov_b32 v{IM}, v{p+3}")
        for t in cmul(G, p+4, p+2, IM): a(t)
        for t in ev(H+2, 1) + ev(E16, 16) + ev(PW, 256): a(t)
        a(f"v_mov_b32 v{H}, 1.0\nv_mov_b32 v{H+1}, 0")
        a(f"v_mov_b32 v{IM}, v{H+3}\nv_mov_b32 v{IM+2}, v{E16+1}\nv_mov_b32 v{IM+4}, v{PW+1}")
        for j in range(16):
            g = G + 2*(j & 1); gn = G + 2*((j+1) & 1)
            cv = CV + 2*(j & 1)
            ops = []
            x = cmul(H+2*(j+1), H+2*j, H+2, IM) if 1 <= j < 15 else []
            y = cmul(gn, g, E16, IM+2) if j < 15 else []
            z = cmul(PW+2*(j+1), PW+2*j, PW, IM+4) if j < 7 else []
            for q in range(2):
                for l in (x, y, z):
                    if l: ops.append(l[q])
                if q == 0:
                    ops.append(f"v_cvt_pk_bf16_f32 v{cv}, v{H+2*j}, v{H+2*j+1}")
                    ops.append(f"v_cvt_pk_bf16_f32 v{cv+1}, v{g}, -v{g+1}")
            ops.append(f"ds_write2st64_b32 v{AD+j}, v{cv}, v{cv+1} offset0:{j} offset1:{48+j}")
            for t in ops: a(t)
        for k in range(2, 8): a(f"v_mov_b32 v{IM+2+2*k}, v{PW+2*(k-1)+1}")
        def val(row, d):
            if row < 24: hj, pk = 2*(row-16), 1
            elif row < 32: hj, pk = 4*((row-24) & 3), 2 + ((row-24) >> 2)
            elif row < 40: hj, pk = 8*((row-32) & 1), 4 + ((row-32) >> 1)
            else: hj, pk = 0, 8
            if hj == 0: return [], PW + 2*(pk-1)
            return cmul(d, H+2*hj, PW+2*(pk-1), IM+2+2*pk), d
        for j in range(16):
            cv = CV + 2*(j & 1)
            tm = TM + 4*(j & 1)
            o1, r1 = val(16+j, tm)
            if j <= 8:
                o2, r2 = val(32+j, tm+2)
                for q in range(2):
                    if o1: a(o1[q])
                    if o2: a(o2[q])
                a(f"v_cvt_pk_bf16_f32 v{cv}, v{r1}, v{r1+1}\nv_cvt_pk_bf16_f32 v{cv+1}, v{r2}, v{r2+1}")
                a(f"ds_write2st64_b32 v{AD+j}, v{cv}, v{cv+1} offset0:{16+j} offset1:{32+j}")
            else:
                for t in o1: a(t)
                a(f"v_cvt_pk_bf16_f32 v{cv}, v{r1}, v{r1+1}")
                a(f"ds_write_b32 v{AD+j}, v{cv} offset:{(16+j)*256}")
        a("s_waitcnt lgkmcnt(0)")
        for ks in range(4):
            for t in (3, 0, 1, 2):
                a(f"ds_read_b128 {vr(FR+16*ks+4*t,4)}, v{RA+ks} offset:{t*4096}")
            if ks == 2: a("s_waitcnt lgkmcnt(8)")
        for ks in range(4):
            a(f"s_waitcnt lgkmcnt({12-4*ks})")
            for t in range(3):
                a(f"v_mfma_f32_16x16x32_bf16 {vr(ACC+4*t,4)}, {vr(FR+16*ks+4*t,4)}, {vr(FR+16*ks+12,4)}, {vr(ACC+4*t,4)}")
    a("v_and_b32 v4, 15, v0\nv_lshrrev_b32 v5, 4, v0")
    a("s_add_u32 s29, s28, 16")
    a("v_lshlrev_b32 v6, 3, v5\nv_lshl_add_u32 v6, v4, 5, v6\nv_add_u32 v6, s29, v6")
    a("v_lshlrev_b32 v7, 3, v5\nv_lshl_add_u32 v7, v4, 4, v7")
    a("v_lshlrev_b32 v8, 7, v5\nv_lshl_add_u32 v8, v4, 3, v8")
    a("v_cmp_gt_u32 vcc, 2, v5")
    a("v_cndmask_b32 v7, v8, v7, vcc\nv_add_u32 v7, s29, v7")
    a("v_lshlrev_b32 v8, 7, v5\nv_lshl_add_u32 v8, v4, 2, v8\nv_add_u32 v8, s29, v8")
    for t in range(3):
        a(f"v_cvt_pk_bf16_f32 v{10+2*t}, v{ACC+4*t}, v{ACC+4*t+1}\nv_cvt_pk_bf16_f32 v{11+2*t}, v{ACC+4*t+2}, v{ACC+4*t+3}")
    a("ds_write_b64 v6, v[10:11]")
    a("ds_write_b64 v7, v[12:13] offset:512")
    a("ds_write_b32 v8, v14 offset:1024")
    a("ds_write_b32 v8, v15 offset:1088")
    a("v_mov_b32 v9, s28\nv_mov_b32 v16, 0")
    a("ds_write_b32 v9, v16 offset:12")
    a(f"s_add_u32 s30, s29, {(256 - 0x8600) & 0xffffffff}")
    a("v_mov_b32 v17, s30")
    a("v_lshlrev_b32 v18, 3, v0\nv_sub_u32 v18, 2047, v18")
    a("v_cvt_f32_i32 v19, v18")
    a("v_lshlrev_b32 v1, 4, v0")
    a(f"s_lshl_b32 s31, s25, 13\ns_add_u32 s31, s31, {WS_KR}\ns_add_u32 s32, s31, 4096")
    EL = 60; AA = 100; OU = 132
    for i in range(4):
        for e in range(0, 10, 2):
            a(f"v_add_f32 v20, {f32(float(-(512*i+e)))}, v19\nv_add_f32 v21, {f32(float(-(512*i+e+1)))}, v19")
            a("v_cvt_pk_bf16_f32 v20, v20, v21")
            a(f"v_mad_u32_u16 v{AA+e}, v20, 2, v17")
            if e < 8: a(f"v_mad_u32_u16 v{AA+e+1}, v20, 2, v17 op_sel:[1,0,0,0]")
        if i == 3:
            for e in range(9):
                a(f"v_subrev_u32 v20, {1536+e}, v18")
                a("v_cmp_gt_i32 vcc, 128, v20")
                a("v_lshl_add_u32 v20, v20, 1, s29")
                a(f"v_cndmask_b32 v{AA+e}, v{AA+e}, v20, vcc")
        for e in range(9): a(f"ds_read_u16 v{EL+10*i+e}, v{AA+e}")
        a("s_waitcnt lgkmcnt(0)")
        o = OU + 8*i; el = EL + 10*i
        for k in range(4):
            a(f"v_lshl_or_b32 v{o+k}, v{el+2*k+1}, 16, v{el+2*k}")
            a(f"v_lshl_or_b32 v{o+4+k}, v{el+2*k+2}, 16, v{el+2*k+1}")
        a(f"buffer_store_dwordx4 {vr(o,4)}, v1, s[20:23], s31 offen offset:{1024*i} {ST}")
        a(f"buffer_store_dwordx4 {vr(o+4,4)}, v1, s[20:23], s32 offen offset:{1024*i} {ST}")
    stamp_end(a, 0, 20, 24)
    a("s_endpgm")

def conv(a, wg0):
    a("s_load_dwordx4 s[4:7], s[0:1], 112")
    a("v_lshrrev_b32 v1, 6, v0")
    a("v_and_b32 v0, 63, v0")
    a("v_readfirstlane_b32 s24, v1")
    a(f"s_sub_u32 s25, s2, {wg0}")
    a("s_lshl_b32 s26, s25, 2\ns_add_u32 s26, s26, s24")
    WSZ = 13312
    UO, R0, R1 = 0, 4608, 4608+4160
    YO = 4*WSZ
    a(f"s_mul_i32 s28, s24, {WSZ}")
    a("v_lshrrev_b32 v2, 2, v0\nv_mul_u32_u24 v2, 40960, v2\nv_and_b32 v3, 3, v0\nv_lshl_add_u32 v2, v3, 4, v2")
    a("v_lshlrev_b32 v1, 4, v0")
    a("v_and_b32 v4, 15, v0\nv_lshrrev_b32 v5, 4, v0")
    a("v_lshrrev_b32 v3, 1, v4\nv_mul_u32_u24 v3, 40960, v3\nv_and_b32 v6, 1, v4\nv_lshl_add_u32 v3, v6, 5, v3\nv_lshl_add_u32 v3, v5, 3, v3")
    a(f"s_lshl_b32 s29, s26, 6\ns_add_u32 s30, s29, {WS_UT}\ns_add_u32 s31, s29, {WS_ZT}")
    a(f"s_lshl_b32 s32, s26, 13\ns_add_u32 s32, s32, {WS_KR}")
    a("s_waitcnt lgkmcnt(0)")
    srd(a, 20, 6, WS_SIZE)
    srd(a, 16, 4, 256)
    for i in range(4):
        a(f"s_add_u32 m0, s28, {UO+512+1024*i}\ns_nop 0")
        a(f"buffer_load_dwordx4 v2, s[20:23], s30 offen lds")
        a(f"s_add_u32 s30, s30, {16*40960}")
    for c in range(2):
        a(f"s_add_u32 m0, s28, {R0 if c == 0 else R1}\ns_nop 0")
        for i in range(4):
            a(f"buffer_load_dwordx4 v1, s[20:23], s32 offen offset:{1024*i} lds")
        a("s_add_u32 s32, s32, 4096")
    ZR = 16
    for i in range(8):
        a(f"buffer_load_dwordx2 {vr(ZR+2*i,2)}, v3, s[20:23], s31 offen")
        a(f"s_add_u32 s31, s31, {8*40960}")
    a("v_mov_b32 v8, 0\nv_mov_b32 v9, 0")
    a("v_lshl_add_u32 v6, v0, 3, s28")
    a("ds_write_b64 v6, v[8:9]")
    a("v_lshl_add_u32 v6, v4, 2, s28")
    a(f"ds_write_b32 v6, v8 offset:{R0+4096}")
    a(f"ds_write_b32 v6, v8 offset:{R1+4096}")
    FAD = 10
    a(f"s_add_u32 s33, s28, {UO + 512 - 480}")
    a(f"v_lshlrev_b32 v6, 4, v5\nv_lshl_add_u32 v6, v4, 5, v6\nv_add_u32 v{FAD}, s33, v6")
    TAD = 11
    a("v_or_b32 v6, 1, v4\nv_sub_u32 v6, 2031, v6\nv_lshlrev_b32 v6, 1, v6\nv_lshl_add_u32 v6, v5, 4, v6")
    a(f"v_and_b32 v7, 1, v4\nv_mul_u32_u24 v7, {R1-R0}, v7\nv_sub_u32 v6, v6, v7")
    a(f"s_add_u32 s33, s28, {R1 - 512 - 448}")
    a("v_add_u32 v6, s33, v6")
    for qq in range(4): a(f"v_subrev_u32 v{TAD+qq}, {1024*qq}, v6")
    ACC = 32; S0 = 64; S1 = 128
    def rd(S, rho):
        o = []
        for j in range(8):
            o.append(f"ds_read_b128 {vr(S+4*j,4)}, v{FAD} offset:{512*j + 2*(224-rho)}")
            q = j
            d0 = 128*(1-(q & 1)) + (224-rho)//2
            o.append(f"ds_read2_b32 {vr(S+32+4*q,2)}, v{TAD+(q>>1)} offset0:{d0} offset1:{d0+1}")
            o.append(f"ds_read2_b32 {vr(S+34+4*q,2)}, v{TAD+(q>>1)} offset0:{d0+2} offset1:{d0+3}")
        return o
    def mm(S):
        o = []
        for q in range(8):
            for j in range(8-q):
                i = q + j
                o.append(f"v_mfma_f32_16x16x32_bf16 {vr(ACC+4*i,4)}, {vr(S+32+4*q,4)}, {vr(S+4*j,4)}, {vr(ACC+4*i,4)}")
        return o
    a("s_waitcnt vmcnt(8) lgkmcnt(0)")
    r = rd(S0, 0)
    for k, t in enumerate(r):
        a(t)
        if k == 11: a("s_waitcnt lgkmcnt(0)")
    a("s_waitcnt vmcnt(0)")
    for i in range(16):
        a(f"v_lshlrev_b32 v{ACC+2*i}, 16, v{ZR+i}\nv_and_b32 v{ACC+2*i+1}, 0xffff0000, v{ZR+i}")
    stamp_mid(a, 0)
    for it in range(8):
        S, Sn = (S0, S1) if it % 2 == 0 else (S1, S0)
        a("s_waitcnt lgkmcnt(0)")
        fill = rd(Sn, 32*(it+1)) if it < 7 else []
        for t in interleave(mm(S), fill, per=1): a(t)
    stamp_mid(a, 1)
    a(f"s_mul_i32 s33, s24, 4160\ns_add_u32 s33, s33, {YO}")
    a("v_lshlrev_b32 v6, 3, v5\nv_lshl_add_u32 v6, v4, 5, v6\nv_add_u32 v6, s33, v6")
    for i in range(8):
        a(f"v_cvt_pk_bf16_f32 v{ZR+2*i}, v{ACC+4*i}, v{ACC+4*i+1}\nv_cvt_pk_bf16_f32 v{ZR+2*i+1}, v{ACC+4*i+2}, v{ACC+4*i+3}")
        a(f"ds_write_b64 v6, {vr(ZR+2*i,2)} offset:{512*i}")
    a("v_lshrrev_b32 v6, 2, v0\nv_and_b32 v6, 3, v6\nv_mul_u32_u24 v6, 4160, v6")
    a("v_lshl_add_u32 v6, v5, 6, v6\nv_and_b32 v7, 3, v0\nv_lshl_add_u32 v6, v7, 3, v6")
    a(f"s_lshl_b32 s33, s24, 10\ns_add_u32 s33, s33, {YO}")
    a("v_add_u32 v6, s33, v6")
    a(f"s_lshl_b32 s33, s25, 14\ns_lshl_b32 s34, s24, 12\ns_add_u32 s33, s33, s34\ns_add_u32 s33, s33, {WS_Y}")
    a("s_waitcnt lgkmcnt(0)\ns_barrier")
    for k in range(4):
        a(f"ds_read_b64_tr_b16 {vr(ACC+4*k,2)}, v6 offset:{256*k}")
        a(f"ds_read_b64_tr_b16 {vr(ACC+4*k+2,2)}, v6 offset:{256*k+32}")
    for k in range(4):
        a(f"s_waitcnt lgkmcnt({6-2*k})")
        a(f"buffer_store_dwordx4 {vr(ACC+4*k,4)}, v1, s[20:23], s33 offen offset:{1024*k} sc1")
    a("s_waitcnt vmcnt(0)\ns_barrier")
    a("s_cmp_lg_u32 s24, 0\ns_cbranch_scc1 L_conv_done")
    a("v_mov_b32 v6, s25\nv_mov_b32 v7, 1")
    a("v_cmp_eq_u32 vcc, 0, v0\ns_and_saveexec_b64 s[34:35], vcc")
    a("buffer_store_byte v7, v6, s[16:19], 0 offen sc1")
    a("s_mov_b64 exec, s[34:35]")
    a("L_conv_done:")
    stamp_end(a, 1, 20, 24)
    a("s_endpgm")

def gemm2(a, wg0):
    a("s_load_dwordx2 s[8:9], s[0:1], 104")
    a("s_load_dwordx4 s[4:7], s[0:1], 112")
    a("v_lshrrev_b32 v1, 6, v0")
    a("v_and_b32 v0, 63, v0")
    a("v_readfirstlane_b32 s24, v1")
    a(f"s_sub_u32 s25, s2, {wg0}")
    a("s_and_b32 s26, s25, 7\ns_lshr_b32 s27, s25, 3")
    a("s_lshr_b32 s28, s26, 1\ns_lshl_b32 s28, s28, 3\ns_and_b32 s29, s27, 7\ns_add_u32 s28, s28, s29")
    a("s_and_b32 s29, s26, 1\ns_lshl_b32 s29, s29, 2\ns_lshr_b32 s30, s27, 3\ns_add_u32 s29, s29, s30")
    if OPT['rot'] == 1:
        a("s_and_b32 s31, s27, 7\ns_mul_i32 s31, s31, 3\ns_lshr_b32 s31, s31, 1\ns_mul_i32 s32, s30, 3\ns_add_u32 s31, s31, s32")
        a("s_cmp_ge_u32 s31, 12\ns_cselect_b32 s32, 12, 0\ns_sub_u32 s31, s31, s32")
    else:
        a("s_mov_b32 s31, 0")
    a("v_lshlrev_b32 v1, 4, v0")
    for nu in range(4):
        a(f"s_xor_b32 s32, s24, {nu}\ns_mul_i32 s32, s32, 49152")
        a(f"v_add_u32 v{2+nu}, s32, v1")
    a("v_add_u32 v6, 4096, v1")
    a(f"s_mul_i32 s34, s28, 196608\ns_mul_i32 s32, s24, 12288\ns_add_u32 s34, s34, s32\ns_add_u32 s34, s34, {WS_H}")
    a(f"s_mul_i32 s35, s29, 245760\ns_mul_i32 s32, s24, 61440\ns_add_u32 s35, s35, s32\ns_add_u32 s35, s35, {WS_WD}")
    a("s_waitcnt lgkmcnt(0)")
    srd(a, 20, 6, WS_SIZE)
    srd(a, 16, 4, 256)
    srd(a, 12, 8, 2621440)
    DEP = 3
    FR = 16; ACC = FR + 36*DEP
    def issue(s):
        r = FR + (s % DEP)*36
        o = ["s_lshl_b32 s36, s31, 10\ns_add_u32 s36, s36, s34\ns_mul_i32 s37, s31, 5120\ns_add_u32 s37, s37, s35\ns_add_u32 s31, s31, 1\ns_cmp_eq_u32 s31, 12\ns_cselect_b32 s31, 0, s31"]
        for j in range(5):
            if j < 4: o.append(f"buffer_load_dwordx4 {vr(r+16+4*j,4)}, v1, s[20:23], s37 offen offset:{1024*j}")
            else: o.append(f"buffer_load_dwordx4 {vr(r+16+4*j,4)}, v6, s[20:23], s37 offen")
            if j < 4: o.append(f"buffer_load_dwordx4 {vr(r+4*j,4)}, v{2+j}, s[20:23], s36 offen")
        return o
    for s in range(DEP):
        for t in issue(s): a(t)
    for i in range(80): a(f"v_mov_b32 v{ACC+i}, 0")
    for s in range(12):
        rem = min(DEP, 12 - s) - 1
        a(f"s_waitcnt vmcnt({9*rem})")
        r = FR + (s % DEP)*36
        for nu in range(4):
            for j in range(5):
                c = ACC + (nu*5+j)*4
                a(f"v_mfma_f32_16x16x32_bf16 {vr(c,4)}, {vr(r+16+4*j,4)}, {vr(r+4*nu,4)}, {vr(c,4)}")
        if s + DEP < 12:
            for t in issue(s + DEP): a(t)
    stamp_mid(a, 0)
    for nu in range(1, 4):
        a(f"s_xor_b32 s32, s24, {nu}\ns_mul_i32 s32, s32, 15360\ns_add_u32 s32, s32, {(nu-1)*5120}")
        a(f"v_add_u32 v7, s32, v1")
        for j in range(5):
            a(f"ds_write_b128 v7, {vr(ACC+(nu*5+j)*4,4)} offset:{1024*j}")
    a("s_mul_i32 s32, s29, 20")
    a("v_min_u32 v8, 4, v0\nv_lshl_add_u32 v8, v8, 2, s32")
    a("s_mov_b32 s38, 0")
    a("L_g2_poll:")
    a(f"s_add_u32 s38, s38, 1\ns_cmp_gt_u32 s38, {OPT['spin']}\ns_cbranch_scc1 L_g2_ready")
    a("buffer_load_dword v9, v8, s[16:19], 0 offen sc1")
    a("s_waitcnt vmcnt(0)")
    a("v_cmp_ne_u32 vcc, 0x01010101, v9")
    a("s_cbranch_vccz L_g2_ready")
    a("s_sleep 4")
    a("s_branch L_g2_poll")
    a("L_g2_ready:")
    stamp_mid(a, 1)
    a("v_and_b32 v10, 15, v0\nv_lshrrev_b32 v11, 4, v0")
    a("v_lshlrev_b32 v12, 4, v10")
    a("v_lshl_add_u32 v13, v11, 14, v12")
    a("v_lshl_add_u32 v12, v11, 15, v12")
    a(f"s_mul_i32 s32, s29, {20*16384}\ns_lshl_b32 s33, s28, 9\ns_add_u32 s32, s32, s33\ns_lshr_b32 s33, s24, 1\ns_lshl_b32 s33, s33, 8\ns_add_u32 s32, s32, s33")
    a(f"s_and_b32 s33, s24, 1\ns_lshl_b32 s33, s33, 3\ns_add_u32 s32, s32, s33\ns_add_u32 s32, s32, {WS_Y}")
    Y = FR
    for j in range(5):
        cgo = (8*(j >> 1) + (j & 1)) if j < 4 else 16
        a(f"s_add_u32 s33, s32, {cgo*16384}")
        a(f"buffer_load_dwordx2 {vr(Y+2*j,2)}, v{12 if j < 4 else 13}, s[20:23], s33 offen sc1")
    a("s_waitcnt lgkmcnt(0)\ns_barrier")
    a("s_mul_i32 s32, s24, 15360")
    a("v_add_u32 v7, s32, v1")
    PR = FR + 12
    for k in range(15):
        a(f"ds_read_b128 {vr(PR+4*k,4)}, v7 offset:{1024*k}")
    a("s_lshl_b32 s32, s28, 6\ns_lshl_b32 s33, s24, 4\ns_add_u32 s32, s32, s33\ns_mul_i32 s32, s32, 1280\ns_mul_i32 s33, s29, 160\ns_add_u32 s32, s32, s33")
    a("v_mul_u32_u24 v12, 1280, v10")
    a("v_lshl_add_u32 v13, v11, 3, v12\nv_lshl_add_u32 v12, v11, 4, v12")
    for k in range(15):
        j = k % 5
        a(f"s_waitcnt lgkmcnt({14-k})")
        for h in range(2):
            a(f"v_pk_add_f32 {vr(ACC+4*j+2*h,2)}, {vr(ACC+4*j+2*h,2)}, {vr(PR+4*k+2*h,2)}")
    a("s_waitcnt vmcnt(0)")
    O = FR + 76
    for j in range(5):
        for h in range(2):
            a(f"v_lshlrev_b32 v8, 16, v{Y+2*j+h}\nv_and_b32 v9, 0xffff0000, v{Y+2*j+h}")
            a(f"v_pk_add_f32 v[8:9], v[8:9], {vr(ACC+4*j+2*h,2)}")
            a(f"v_cvt_pk_bf16_f32 v{O+2*j+h}, v8, v9")
        if j == 1: a(f"buffer_store_dwordx4 {vr(O,4)}, v12, s[12:15], s32 offen")
        if j == 3: a(f"buffer_store_dwordx4 {vr(O+4,4)}, v12, s[12:15], s32 offen offset:64")
        if j == 4: a(f"buffer_store_dwordx2 {vr(O+8,2)}, v13, s[12:15], s32 offen offset:128")
    stamp_end(a, 1, 20, 24)
    a("s_endpgm")

def build():
    hdr = open('cdna_kernels/%s.s.ref' % NAME).read().split('; Override launch')[0]
    a = A()
    a(hdr.rstrip('\n'))
    a("; @launch kernel=k1_kernel grid=(528,1,1) block=(256,1,1) lds=81920")
    a("; @launch kernel=k2_kernel grid=(416,1,1) block=(256,1,1) lds=81920")
    a('.amdgcn_target "amdgcn-amd-amdhsa--gfx950"')
    a(kernel_header('k1_kernel'))
    stamp_begin(a)
    a("s_cmp_ge_u32 s2, 256\ns_cbranch_scc1 L_k1_help")
    gemm1(a)
    a("L_k1_help:")
    if OPT.get('nohelp'): a("s_endpgm")
    a("s_cmp_ge_u32 s2, 416\ns_cbranch_scc1 L_k1_ln")
    kgen(a, 256)
    a("L_k1_ln:")
    a("s_cmp_ge_u32 s2, 480\ns_cbranch_scc1 L_k1_wd")
    ln(a, 416)
    a("L_k1_wd:")
    a("s_cmp_ge_u32 s2, 528\ns_cbranch_scc1 L_k1_end")
    wdprep(a, 480)
    a("L_k1_end:\ns_endpgm")
    a(kernel_header('k2_kernel'))
    stamp_begin(a)
    a("s_cmp_ge_u32 s2, 160\ns_cbranch_scc1 L_k2_g")
    conv(a, 0)
    a("L_k2_g:")
    a("s_cmp_ge_u32 s2, 416\ns_cbranch_scc1 L_k2_end")
    gemm2(a, 160)
    a("L_k2_end:\ns_endpgm")
    a(kernel_desc('k1_kernel', 200))
    a(kernel_desc('k2_kernel', 208))
    return hz.fix(a.text(), verbose=True)

if __name__ == '__main__':
    out = sys.argv[1]
    for kv in sys.argv[2:]:
        k, v = kv.split('=')
        OPT[k] = int(v) if v.lstrip('-').isdigit() else ('' if v == 'none' else v)
    open(out, 'w').write(build())
ROLES = [[('gemm1',0,256),('kgen',256,416),('ln',416,480),('wd',480,528)], [('conv',0,160),('gemm2',160,416)]]
```
